```python
import torch

def _softmax(x, axis=-1):
    return torch.softmax(x, dim=axis)
def _gelu(x):
    return torch.nn.functional.gelu(x, approximate="tanh")
def _silu(x):
    return torch.nn.functional.silu(x)
def _sigmoid(x):
    return torch.sigmoid(x)
def _layernorm(x, axis=-1, eps=1e-5):
    m = x.mean(dim=axis, keepdim=True)
    v = x.var(dim=axis, keepdim=True, unbiased=False)
    return (x - m) / torch.sqrt(v + eps)
def _scatter_add(tgt, idx, src, axis=0):
    return tgt.clone().index_add_(axis, idx, src)
def _segment_sum(src, seg, n):
    out = torch.zeros((n,) + src.shape[1:], dtype=src.dtype)
    return out.index_add_(0, seg, src)
def _pad(x, pw):
    flat = tuple(v for pair in reversed(pw) for v in pair)
    return torch.nn.functional.pad(x, flat)

kernel_name = 'interleave_layers__ssm_conv_s4d__glu_gated_bilinear__prompt'

def setup_inputs():

    _w = (lambda a: (lambda t: t.to(torch.bfloat16) if t.is_floating_point() else t)(torch.as_tensor(a)))
    def _A_setup():
        Bsz, L, D, N = 1, 2048, 512, 128
        return {
            "u": _w((lambda *s: torch.randn(*s, dtype=torch.bfloat16) * 0.05)(Bsz, L, D)),
            "log_A_real": _w((lambda *s: torch.randn(*s, dtype=torch.bfloat16) * 3.2)(D, N) * 0.5),
            "A_imag": _w((lambda *s: torch.randn(*s, dtype=torch.bfloat16) * 0.05)(D, N) * 3.14),
            "C_real": _w((lambda *s: torch.randn(*s, dtype=torch.bfloat16) * 0.05)(D, N) / N ** 0.5),
            "C_imag": _w((lambda *s: torch.randn(*s, dtype=torch.bfloat16) * 0.05)(D, N) / N ** 0.5),
            "log_dt": _w((lambda *s: torch.randn(*s, dtype=torch.bfloat16) * 0.05)(D) * 0.5 - 4.0),
            "D_skip": _w((lambda *s: torch.randn(*s, dtype=torch.bfloat16) * 0.05)(D)),
        }
    _A_in = _A_setup()

    def _B_setup():
        B, S, D, F = 1, 2048, 512, 1376
        return {
            "x": _w((lambda *s: torch.randn(*s, dtype=torch.bfloat16) * 0.05)(B, S, D)),
            "w_gate": _w((lambda *s: torch.randn(*s, dtype=torch.bfloat16) * 0.4)(D, F) * (D ** -0.5)),
            "w_up": _w((lambda *s: torch.randn(*s, dtype=torch.bfloat16) * 0.4)(D, F) * (D ** -0.5)),
            "w_down": _w((lambda *s: torch.randn(*s, dtype=torch.bfloat16) * 0.4)(F, D) * (F ** -0.5)),
        }
    _B_in = _B_setup()

    return {
        "A_u": _A_in["u"],
        "A_log_A_real": _A_in["log_A_real"],
        "A_A_imag": _A_in["A_imag"],
        "A_C_real": _A_in["C_real"],
        "A_C_imag": _A_in["C_imag"],
        "A_log_dt": _A_in["log_dt"],
        "A_D_skip": _A_in["D_skip"],
        "B_x": _B_in["x"],
        "B_w_gate": _B_in["w_gate"],
        "B_w_up": _B_in["w_up"],
        "B_w_down": _B_in["w_down"],
    }

def reference(A_u, A_log_A_real, A_A_imag, A_C_real, A_C_imag, A_log_dt, A_D_skip, B_x, B_w_gate, B_w_up, B_w_down):
    def _A_ref(u, log_A_real, A_imag, C_real, C_imag, log_dt, D_skip):
        L = u.shape[1]
        dt = torch.exp(log_dt)
        A = -torch.exp(log_A_real) + 1j * A_imag
        C = (C_real + 1j * C_imag) * dt[:, None]
        pos = (lambda x, dt: x.to(dt))(torch.arange(L), log_dt.dtype)
        P = torch.exp((A * dt[:, None])[:, :, None] * pos[None, None, :])
        K = 2.0 * torch.einsum("dn,dnl->dl", C, P).real
        L2 = 2 * L
        u_t = (lambda x, *d: x.permute(*d))(u, 0, 2, 1)
        Kf = (lambda x, *a, **k: torch.fft.rfft(x.float(), *a, **k))(K, L2)
        Uf = (lambda x, *a, **k: torch.fft.rfft(x.float(), *a, **k))(u_t, L2)
        y = (lambda x, *a, **k: torch.fft.irfft(x, *a, **k).to(torch.bfloat16))(Uf * Kf[None, :, :], L2)[:, :, :L]
        y = (lambda x, *d: x.permute(*d))(y, 0, 2, 1)
        return y + u * D_skip[None, None, :]

    def _B_ref(x, w_gate, w_up, w_down):
        g = torch.einsum("bsd,df->bsf", x, w_gate)
        u = torch.einsum("bsd,df->bsf", x, w_up)
        h = g * u
        return torch.einsum("bsf,fd->bsd", h, w_down)

    x = A_u
    x = x + _A_ref(_layernorm(x, axis=-1), A_log_A_real, A_A_imag, A_C_real, A_C_imag, A_log_dt, A_D_skip)
    x = x + _B_ref(_layernorm(x, axis=-1), B_w_gate, B_w_up, B_w_down)
    x = x + _A_ref(_layernorm(x, axis=-1), A_log_A_real, A_A_imag, A_C_real, A_C_imag, A_log_dt, A_D_skip)
    x = x + _B_ref(_layernorm(x, axis=-1), B_w_gate, B_w_up, B_w_down)
    return x
```

```python
import re

TRANS = {"v_exp_f32","v_log_f32","v_rcp_f32","v_rsq_f32","v_sqrt_f32","v_sin_f32","v_cos_f32","v_rcp_iflag_f32"}
RMW_VALU = ("v_fmac_","v_dot2c_","v_dot4c_","v_pk_fmac","v_mac_", "v_writelane")

def regs_of(tok):
    tok = tok.strip()
    tok = re.sub(r"^-", "", tok)
    m = re.match(r"^(?:abs|neg)\((.*)\)$", tok)
    if m: tok = m.group(1)
    tok = tok.strip("|")
    m = re.match(r"^([vas])(\d+)$", tok)
    if m: return {(m.group(1), int(m.group(2)))}
    m = re.match(r"^([vas])\[(\d+):(\d+)\]$", tok)
    if m: return {(m.group(1), i) for i in range(int(m.group(2)), int(m.group(3))+1)}
    if tok in ("vcc","vcc_lo","vcc_hi"): return {("s","vcc")}
    if tok in ("exec","exec_lo","exec_hi"): return {("s","exec")}
    if tok == "m0": return {("s","m0")}
    return set()

class Ins:
    def __init__(self, text):
        self.text = text
        t = text.split(";")[0].strip()
        self.label = None
        self.op = None
        self.dst = set(); self.src = set()
        self.srcC = set(); self.srcAB = set()
        self.kind = None
        self.mods = ""
        if not t or t.startswith("."):
            self.kind = "dir"; return
        if t.endswith(":"):
            self.kind = "label"; self.label = t[:-1]; return
        parts = t.split(None, 1)
        op = parts[0]; rest = parts[1] if len(parts) > 1 else ""
        self.op = op
        ops = []; depth = 0; cur = ""
        for ch in rest:
            if ch in "[(": depth += 1
            if ch in "])": depth -= 1
            if ch == "," and depth == 0: ops.append(cur.strip()); cur = ""
            else: cur += ch
        if cur.strip(): ops.append(cur.strip())
        if ops:
            last = ops[-1].split(None, 1)
            ops[-1] = last[0]
            self.mods = last[1] if len(last) > 1 else ""
        self.ops = ops
        R = [regs_of(o) for o in ops]
        base = re.sub(r"_(e32|e64|dpp|sdwa)$", "", op)
        self.base = base
        allsrc = lambda lst: set().union(*lst) if lst else set()
        if op.startswith("v_mfma") or op.startswith("v_smfmac"):
            self.kind = "mfma"
            self.dst = R[0]; self.srcAB = R[1] | R[2]; self.srcC = R[3]; self.src = self.srcAB | self.srcC
            self.passes = 8 if "32x32x16" in op or "32x32x8" in op else 4 if ("16x16x32" in op or "16x16x16" in op) else None
            assert self.passes, op
        elif op.startswith("v_"):
            self.kind = "valu"
            if base.startswith("v_cmpx"):
                self.dst = R[0] | {("s","exec")}; self.src = allsrc(R[1:])
            elif base.startswith("v_cmp"):
                self.dst = R[0]; self.src = allsrc(R[1:])
            elif base in ("v_add_co_u32","v_sub_co_u32","v_subrev_co_u32","v_addc_co_u32","v_subb_co_u32","v_div_scale_f32","v_mad_u64_u32"):
                self.dst = R[0] | R[1]; self.src = allsrc(R[2:])
            elif base.startswith("v_permlane") and "swap" in base or base == "v_swap_b32":
                self.dst = R[0] | R[1]; self.src = R[0] | R[1]
            elif base == "v_nop":
                pass
            else:
                self.dst = R[0]; self.src = allsrc(R[1:])
                if base.startswith(RMW_VALU): self.src |= R[0]
                if "dpp" in op or "row_" in self.mods or "quad_perm" in self.mods:
                    self.src |= R[0]
                if "UNUSED_PRESERVE" in self.mods or base.endswith("_d16_hi"): self.src |= R[0]
            self.is_dpp = op.endswith("_dpp") or "row_" in self.mods or "quad_perm" in self.mods or "wave_" in self.mods
            self.is_trans = base in TRANS
            self.is_dot = base.startswith("v_dot")
            self.is_sdwa_dst = ("dst_sel:" in self.mods and "dst_sel:DWORD" not in self.mods) or (re.search(r"op_sel:\[[01,]*1\]", self.mods) is not None and not base.startswith("v_pk"))
        elif op.startswith("buffer_") or op.startswith("global_") or op.startswith("flat_") or op.startswith("scratch_"):
            self.kind = "vmem"
            self.lds_dma = (" lds" in " " + self.mods) or "load_lds" in op
            self.store_data = set()
            if op in ("buffer_inv","buffer_wbl2"):
                pass
            elif op.startswith("buffer_"):
                if self.lds_dma:
                    self.src = allsrc(R) | {("s","m0")}
                elif "load" in op:
                    self.dst = R[0]; self.src = allsrc(R[1:])
                    if "d16" in op: self.src |= R[0]
                elif "atomic" in op:
                    self.src = allsrc(R)
                    if "sc0" in self.mods: self.dst = R[0]
                else:
                    self.src = allsrc(R); self.store_data = R[0]
            else:
                if self.lds_dma:
                    self.src = allsrc(R) | {("s","m0")}
                elif "load" in op:
                    self.dst = R[0]; self.src = allsrc(R[1:])
                    if "d16" in op: self.src |= R[0]
                elif "atomic" in op:
                    if "sc0" in self.mods: self.dst = R[0]; self.src = allsrc(R[1:])
                    else: self.src = allsrc(R)
                else:
                    self.src = allsrc(R); self.store_data = R[1]
            self.wide_store = bool(self.store_data) and ("x3" in op or "x4" in op)
        elif op.startswith("ds_"):
            self.kind = "ds"
            if "read" in op or "permute" in op or "swizzle" in op or "_rtn" in op:
                self.dst = R[0]; self.src = allsrc(R[1:])
                if "d16" in op: self.src |= R[0]
            else:
                self.src = allsrc(R)
        elif op.startswith("s_"):
            self.kind = "salu"
            if op.startswith(("s_load","s_buffer_load","s_memtime","s_memrealtime","s_atomic")):
                self.kind = "smem"; self.dst = R[0]; self.src = allsrc(R[1:])
            elif op.startswith(("s_cmp","s_cbranch","s_branch","s_waitcnt","s_nop","s_barrier","s_endpgm","s_sleep","s_setprio","s_bitcmp","s_setreg","s_setpc")):
                self.src = allsrc(R)
            else:
                self.dst = R[0]; self.src = allsrc(R[1:])
                if "saveexec" in op: self.dst |= {("s","exec")}
        else:
            raise ValueError("unknown instr: " + text)

    def states(self):
        if self.kind in ("dir","label"): return 0
        if self.op == "s_nop": return int(self.ops[0], 0) + 1
        return 1

def vg(s): return {r for r in s if r[0] in "va"}
def sg(s): return {r for r in s if r[0] == "s"}

def need(p, c):
    n = 0
    pk, ck = p.kind, c.kind
    if pk == "valu":
        pv = vg(p.dst); ps = sg(p.dst)
        if ck == "mfma" and pv & c.src: n = max(n, 3 if p.is_dot else 2)
        if ck == "mfma" and ("s","exec") in ps: n = max(n, 4)
        if ck == "valu":
            if c.is_dpp and pv & c.src: n = max(n, 2)
            if c.is_dpp and ("s","exec") in ps: n = max(n, 5)
            if c.base.startswith("v_permlane"):
                if pv & c.src: n = max(n, 2)
                if ("s","exec") in ps: n = max(n, 4)
            if c.base in ("v_readfirstlane_b32","v_readlane_b32"):
                if pv & c.src: n = max(n, 1)
                if ("s","exec") in ps: n = max(n, 4)
                if c.base == "v_readlane_b32" and ps & sg(c.src): n = max(n, 4)
            if c.base == "v_writelane_b32" and (ps & sg(c.src) or ("s","exec") in ps): n = max(n, 4)
            if p.is_trans and not c.is_trans and pv & c.src: n = max(n, 1)
            if p.is_sdwa_dst and pv & (c.src | c.dst): n = max(n, 1)
            if p.is_dot and (pv & (c.src | c.dst)):
                if c.base == p.base:
                    ab = set().union(*[regs_of(o) for o in c.ops[1:3]])
                    if pv & ab: n = max(n, 3)
                else: n = max(n, 3)
            csrc = sg(c.src)
            if c.base.startswith("v_cndmask") and len(c.ops) == 3: csrc |= {("s","vcc")}
            if (ps - {("s","exec")}) & csrc: n = max(n, 2)
            if ("s","exec") in ps and ("s","exec") in csrc: n = max(n, 2)
            if c.base == "v_div_fmas_f32" and ("s","vcc") in ps: n = max(n, 4)
        if ck in ("vmem",) and ps & sg(c.src): n = max(n, 5)
        if p.is_dot and ck in ("vmem","ds") and pv & c.src: n = max(n, 3)
        if p.is_trans and ck in ("vmem","ds","mfma") and pv & c.src: n = max(n, 2)
        if ck == "salu" and ps & sg(c.src): n = max(n, 1)
    if pk == "salu":
        if ("s","m0") in p.dst and ck == "vmem" and c.lds_dma: n = max(n, 1)
        if ("s","m0") in p.dst and ck == "ds" and "addtid" in c.op: n = max(n, 1)
        if ("s","exec") in p.dst and ck == "valu" and c.is_dpp: n = max(n, 0)
    if pk == "vmem" and p.wide_store:
        if ck == "valu" and p.store_data & c.dst: n = max(n, 2)
        elif ck in ("mfma","vmem","ds") and p.store_data & c.dst: n = max(n, 2)
    if pk == "mfma":
        P = p.passes
        D = p.dst
        big = {4: 8, 8: 12}[P]; ovl = {4: 6, 8: 10}[P]; war = {4: 3, 8: 7}[P]
        if ck == "mfma":
            if D & c.srcAB: n = max(n, big)
            if D & c.srcC:
                if not (D == c.srcC and c.passes == P): n = max(n, ovl)
            if D & c.dst and not (D & c.srcC): n = max(n, big)
        elif ck == "valu":
            if D & (c.src | c.dst): n = max(n, big)
            if p.srcC & c.dst: n = max(n, war)
        elif ck in ("vmem","ds"):
            if D & (c.src | c.dst): n = max(n, big)
            if vg(p.srcC) & c.dst: n = max(n, war)
    return n

MAXD = 14

def fix_hazards(lines, verbose=False):
    ins = [Ins(l) for l in lines]
    changed = True
    total = 0
    while changed:
        changed = False
        labels = {x.label: i for i, x in enumerate(ins) if x.kind == "label"}
        preds = [[] for _ in ins]
        for i, x in enumerate(ins):
            op = x.op or ""
            if i + 1 < len(ins) and op not in ("s_branch","s_endpgm","s_setpc_b64"):
                preds[i+1].append(i)
            if op.startswith(("s_branch","s_cbranch")):
                tgt = x.ops[0]
                assert tgt in labels, tgt
                preds[labels[tgt]].append(i)
        for i, c in enumerate(ins):
            if c.kind in ("dir","label") or c.op in ("s_nop",): continue
            worst = 0
            stack = [(j, 0) for j in preds[i]]
            seen = {}
            while stack:
                j, d = stack.pop()
                if d >= MAXD: continue
                if seen.get(j, 99) <= d: continue
                seen[j] = d
                p = ins[j]
                if p.kind not in ("dir","label"):
                    n = need(p, c)
                    if n - d > worst:
                        worst = n - d; why = p.text
                for k in preds[j]:
                    stack.append((k, d + p.states()))
            if worst > 0:
                if verbose: print(f"hazard: +{worst} before [{c.text.strip()}] after [{why.strip()}]")
                ins.insert(i, Ins(f"    s_nop {worst-1}"))
                total += worst
                changed = True
                break_at = i
                break
        if changed:
            pass
    return [x.text for x in ins], total

class K:
    def __init__(self): self.l = []
    def __call__(self, s):
        for line in s.strip("\n").split("\n"):
            line = line.rstrip()
            if not line.strip(): continue
            st = line.strip()
            self.l.append(st if st.endswith(":") and not st.startswith(";") else "    " + st)
    def label(self, n): self.l.append(n + ":")

def vr(a, n=1): return f"v{a}" if n == 1 else f"v[{a}:{a+n-1}]"
def ar(a, n=1): return f"a{a}" if n == 1 else f"a[{a}:{a+n-1}]"
def sr(a, n=1): return f"s{a}" if n == 1 else f"s[{a}:{a+n-1}]"
```

```python
from asmlib import *
from layout import *
import struct
def fl(x): return "0x%08x" % struct.unpack("<I", struct.pack("<f", x))[0]
import math
LOG2E = 1.4426950408889634
L2E_HI = struct.unpack("<f", struct.pack("<f", LOG2E))[0]
L2E_LO = LOG2E - L2E_HI

NA, NB, NC = 256, 43, 22
PREP_GRID = NA + NB + NC
L_PAR = 0
L_XT  = 4096
L_KT  = 12416
L_FR  = 21120
PREP_LDS = L_FR + 65536

def srd(k, d, lo, hi, size):
    k(f"""
    s_mov_b32 s{d}, {lo}
    s_and_b32 s{d+1}, {hi}, 0xffff
    s_mov_b32 s{d+2}, {size}
    s_mov_b32 s{d+3}, 0x20000
    """)

def exp_acc(k, dst, x, t0, t1):
    k(f"""
    v_mul_f32 v{t0}, s40, v{x}
    v_fma_f32 v{t1}, v{x}, s40, -v{t0}
    v_fmac_f32 v{t1}, s41, v{x}
    v_exp_f32 v{dst}, v{t0}
    v_mul_f32 v{t1}, s42, v{t1}
    v_fmac_f32 v{dst}, v{dst}, v{t1}
    """)

def gen_prep(prefetch_from, prefetch_bytes):
    k = K()
    k(f"""
    s_cmp_ge_u32 s2, {PREP_GRID}
    s_cbranch_scc1 Lp_end
    s_load_dwordx2 s[4:5], s[0:1], {KA['ws']}
    v_lshrrev_b32 v2, 6, v0
    v_and_b32 v1, 63, v0
    v_readfirstlane_b32 s3, v2
    s_cmp_ge_u32 s2, {NA}
    s_cbranch_scc1 Lp_w
    s_load_dwordx8 s[8:15], s[0:1], 0
    s_load_dwordx4 s[16:19], s[0:1], 32
    s_lshl_b32 s20, s2, 13
    v_lshl_add_u32 v3, v0, 4, s20
    s_lshl_b32 s21, s2, 9
    v_lshl_add_u32 v4, v0, 1, s21
    v_lshrrev_b32 v5, 7, v0
    s_lshl_b32 s22, s2, 2
    v_lshl_add_u32 v5, v5, 1, s22
    s_mov_b32 s40, {fl(L2E_HI)}
    s_mov_b32 s41, {fl(L2E_LO)}
    s_mov_b32 s42, {fl(math.log(2))}
    s_mov_b32 s43, 0x3f803f80
    s_mov_b32 s44, 0xffff0000
    s_getpc_b64 s[46:47]
Lp_pc:
    s_add_u32 s46, s46, {prefetch_from}-Lp_pc
    s_addc_u32 s47, s47, 0
    s_lshr_b32 s45, s2, 3
    s_lshl_b32 s45, s45, 10
    s_min_u32 s45, s45, {prefetch_bytes}-1024
    v_lshl_add_u32 v6, v1, 4, s45
    s_waitcnt lgkmcnt(0)
    s_cmp_ge_u32 s3, 4
    s_cbranch_scc1 Lp_nopar
    global_load_ushort v20, v4, s[10:11]
    global_load_ushort v21, v4, s[12:13]
    global_load_ushort v22, v4, s[14:15]
    global_load_ushort v23, v4, s[16:17]
    global_load_ushort v24, v5, s[18:19]
Lp_nopar:
    global_load_dwordx4 v[8:11], v3, s[8:9]
    s_cmp_lg_u32 s3, 7
    s_cbranch_scc1 Lp_nopf
    global_load_dwordx4 v[60:63], v6, s[46:47]
Lp_nopf:
    """)
    srd(k, 24, "s4", "s5", WS_END)
    k(f"""
    s_lshr_b32 s30, s3, 1
    s_and_b32 s31, s3, 1
    v_and_b32 v12, 15, v1
    s_lshl_b32 s32, s30, 1
    s_sub_u32 s32, s32, 2
    v_lshrrev_b32 v13, 3, v12
    v_add_u32 v13, s32, v13
    v_and_b32 v14, 7, v12
    v_max_i32 v15, 1, v13
    v_add_u32 v15, -1, v15
    v_and_b32 v15, 3, v15
    v_lshlrev_b32 v14, v15, v14
    v_lshlrev_b32 v15, v13, 64
    v_and_b32 v15, 0xffffffbf, v15
    v_and_or_b32 v15, v14, 7, v15
    v_lshrrev_b32 v14, 3, v14
    v_lshl_add_u32 v15, v14, 7, v15
    v_lshlrev_b32 v14, 3, v12
    s_cmp_eq_u32 s30, 0
    s_cselect_b64 vcc, -1, 0
    v_cndmask_b32 v15, v15, v14, vcc
    v_cvt_f32_u32 v16, v15
    s_cmp_ge_u32 s3, 4
    s_cbranch_scc1 Lp_x
    s_waitcnt vmcnt(1)
    v_lshlrev_b32 v20, 16, v20
    v_lshlrev_b32 v21, 16, v21
    v_lshlrev_b32 v22, 16, v22
    v_lshlrev_b32 v23, 16, v23
    v_lshlrev_b32 v24, 16, v24
    """)
    exp_acc(k, 25, 20, 26, 27)
    exp_acc(k, 28, 24, 26, 27)
    k(f"""
    v_cvt_pk_bf16_f32 v25, v25, v28
    v_and_b32 v28, s44, v25
    v_lshlrev_b32 v25, 16, v25
    v_mul_f32 v32, v25, v28
    v_mul_f32 v33, v21, v28
    v_add_f32 v28, v28, v28
    v_mul_f32 v32, {fl(-LOG2E)}, v32
    v_mul_f32 v33, 0.15915494, v33
    v_mul_f32 v34, v22, v28
    v_mul_f32 v35, v23, v28
    v_lshlrev_b32 v26, 4, v0
    ds_write_b128 v26, v[32:35] offset:{L_PAR}
Lp_x:
    v_mov_b32 v36, 0
    v_mov_b32 v37, 0
    v_mov_b32 v38, 0
    v_mov_b32 v39, 0
    s_mul_i32 s33, s3, 1040
    v_lshl_add_u32 v26, v1, 4, s33
    s_waitcnt vmcnt(0)
    ds_write_b128 v26, v[8:11] offset:{L_XT}
    """)
    for i in range(4):
        k(f"v_dot2c_f32_bf16 v36, s43, v{8+i}\nv_dot2c_f32_bf16 v37, v{8+i}, v{8+i}")
    for m in ("row_shr:1 row_mask:0xf","row_shr:2 row_mask:0xf","row_shr:4 row_mask:0xf","row_shr:8 row_mask:0xf","row_bcast:15 row_mask:0xa","row_bcast:31 row_mask:0xc"):
        k(f"v_add_f32_dpp v36, v36, v36 {m} bank_mask:0xf\nv_add_f32_dpp v37, v37, v37 {m} bank_mask:0xf")
    k(f"""
    s_lshl_b32 s33, s2, 3
    s_add_u32 s33, s33, s3
    s_lshl_b32 s33, s33, 3
    v_mov_b32 v26, s33
    s_mov_b32 s34, {WS_ST0}
    s_mov_b32 s35, {WS_ST2}
    s_mov_b32 exec_lo, 0
    s_mov_b32 exec_hi, 0x80000000
    buffer_store_dwordx2 v[36:37], v26, s[24:27], s34 offen
    buffer_store_dwordx2 v[38:39], v26, s[24:27], s35 offen
    s_mov_b64 exec, -1
    v_and_b32 v26, 1, v0
    v_lshrrev_b32 v27, 1, v0
    v_mul_u32_u24 v28, 4160, v26
    v_lshl_add_u32 v28, v27, 2, v28
    v_lshlrev_b32 v27, 13, v27
    v_lshl_add_u32 v27, v26, 4, v27
    s_lshl_b32 s33, s2, 5
    s_add_u32 s33, s33, {WS_XP0}
    v_lshrrev_b32 v17, 4, v1
    s_lshl_b32 s34, s31, 11
    v_lshl_add_u32 v18, v17, 6, s34
    s_lshl_b32 s34, s3, 13
    v_lshl_add_u32 v19, v1, 4, s34
    v_mov_b32 v7, v19
    s_waitcnt lgkmcnt(0)
    s_barrier
    ds_read_b32 v8, v28 offset:{L_XT}
    ds_read_b32 v9, v28 offset:{L_XT+1040}
    ds_read_b32 v10, v28 offset:{L_XT+2080}
    ds_read_b32 v11, v28 offset:{L_XT+3120}
    s_mov_b32 s36, 8
    s_waitcnt lgkmcnt(0)
    buffer_store_dwordx4 v[8:11], v27, s[24:27], s33 offen
    s_cmp_lg_u32 s30, 0
    s_cbranch_scc1 Lp_hloop
Lp_lloop:
    """)
    for j in range(4): k(f"ds_read_b128 v[{32+4*j}:{35+4*j}], v18 offset:{L_PAR+16*j}")
    k("v_add_u32 v18, 256, v18")
    for j in range(4):
        b = 32+4*j; t = 48+4*j
        k(f"""
        s_waitcnt lgkmcnt({3-j})
        v_mul_f32 v{b}, v{b}, v16
        v_mul_f32 v{b+1}, v{b+1}, v16
        v_exp_f32 v{b}, v{b}
        v_fract_f32 v{b+1}, v{b+1}
        v_cos_f32 v{t}, v{b+1}
        v_sin_f32 v{t+1}, v{b+1}
        v_mul_f32 v{b+2}, v{b+2}, v{b}
        v_mul_f32 v{b+3}, v{b+3}, v{b}
        v_mul_f32 v{t+2}, v{b+2}, v{t}
        v_mul_f32 v{t+3}, v{b+3}, v{t}
        v_fma_f32 v{t+2}, -v{b+3}, v{t+1}, v{t+2}
        v_fma_f32 v{t+3}, -v{b+2}, v{t+1}, -v{t+3}
        v_cvt_pk_bf16_f32 v{28+j}, v{t+2}, v{t+3}
        """)
    k(f"""
    ds_write_b128 v19, v[28:31] offset:{L_FR}
    v_add_u32 v19, 1024, v19
    s_sub_u32 s36, s36, 1
    s_cmp_lg_u32 s36, 0
    s_cbranch_scc1 Lp_lloop
    s_waitcnt lgkmcnt(0)
    s_barrier
    s_branch Lp_exp
Lp_hloop:
    """)
    for j in range(4): k(f"ds_read_b64 v[{32+4*j}:{33+4*j}], v18 offset:{L_PAR+16*j}")
    k("v_add_u32 v18, 256, v18")
    for j in range(4):
        b = 32+4*j
        k(f"""
        s_waitcnt lgkmcnt({3-j})
        v_mul_f32 v{b}, v{b}, v16
        v_mul_f32 v{b+1}, v{b+1}, v16
        v_exp_f32 v{b}, v{b}
        v_fract_f32 v{b+1}, v{b+1}
        v_cos_f32 v{b+2}, v{b+1}
        v_sin_f32 v{b+3}, v{b+1}
        v_mul_f32 v{b+2}, v{b+2}, v{b}
        v_mul_f32 v{b+3}, v{b+3}, v{b}
        v_cvt_pk_bf16_f32 v{28+j}, v{b+2}, v{b+3}
        """)
    k(f"""
    ds_write_b128 v19, v[28:31] offset:{L_FR}
    v_add_u32 v19, 1024, v19
    s_sub_u32 s36, s36, 1
    s_cmp_lg_u32 s36, 0
    s_cbranch_scc1 Lp_hloop
    s_lshl_b32 s34, s31, 13
    v_lshl_add_u32 v19, v1, 4, s34
    s_waitcnt lgkmcnt(0)
    s_barrier
    """)
    for ks in range(8):
        k(f"ds_read_b128 v[{32+8*ks}:{35+8*ks}], v19 offset:{L_FR+1024*ks}\nds_read_b128 v[{36+8*ks}:{39+8*ks}], v7 offset:{L_FR+1024*ks}")
        if ks == 3: k("s_waitcnt lgkmcnt(4)")
    k(f"""
    s_mul_i32 s34, s31, 2176
    v_lshl_add_u32 v18, v17, 5, v15
    v_add_lshl_u32 v18, v18, s34, 1
    """)
    for ks in range(8):
        k(f"s_waitcnt lgkmcnt({14-2*ks})\nv_mfma_f32_16x16x32_bf16 v[28:31], v[{32+8*ks}:{35+8*ks}], v[{36+8*ks}:{39+8*ks}], {'0' if ks==0 else 'v[28:31]'}")
    k(f"""
    v_cvt_pk_bf16_f32 v28, v28, v29
    v_cvt_pk_bf16_f32 v30, v30, v31
    ds_write_b16 v18, v28 offset:{L_KT}
    ds_write_b16_d16_hi v18, v28 offset:{L_KT+16}
    ds_write_b16 v18, v30 offset:{L_KT+32}
    ds_write_b16_d16_hi v18, v30 offset:{L_KT+48}
Lp_exp:
    v_and_b32 v20, 255, v0
    v_lshlrev_b32 v21, 3, v20
    v_sub_u32 v21, 2047, v21
    v_cvt_f32_u32 v21, v21
    s_lshr_b32 s34, s3, 2
    s_mul_i32 s35, s34, 4352
    """)
    for e in range(0, 8, 2):
        k(f"""
        v_add_f32 v22, {fl(-float(e))}, v21
        v_add_f32 v23, {fl(-float(e+1))}, v21
        v_cvt_pk_bf16_f32 v22, v22, v23
        v_and_b32 v23, s44, v22
        v_lshlrev_b32 v22, 16, v22
        v_cvt_u32_f32 v23, v23
        v_cvt_u32_f32 v22, v22
        v_lshl_add_u32 v{33+e}, v23, 1, s35
        v_lshl_add_u32 v{32+e}, v22, 1, s35
        """)
    k(f"""
    s_lshl_b32 s35, s2, 1
    s_add_u32 s35, s35, s34
    s_mul_i32 s35, s35, {KROW}
    s_add_u32 s35, s35, {WS_KR}
    v_lshlrev_b32 v20, 4, v20
    v_mov_b32 v12, 0
    v_mov_b32 v13, 0
    v_mov_b32 v14, 0
    v_mov_b32 v15, 0
    s_waitcnt lgkmcnt(0)
    s_barrier
    """)
    for e in range(8):
        k(f"ds_read_u16 v{32+e}, v{32+e} offset:{L_KT}")
    k("v_cmp_gt_u32 vcc, 64, v20")
    for e in range(0, 8, 2):
        k(f"s_waitcnt lgkmcnt({6-e})\nv_lshl_or_b32 v{8+e//2}, v{33+e}, 16, v{32+e}")
    k(f"""
    buffer_store_dwordx4 v[8:11], v20, s[24:27], s35 offen
    s_add_u32 s35, s35, 4096
    s_and_b64 exec, exec, vcc
    s_cbranch_execz Lp_end
    buffer_store_dwordx4 v[12:15], v20, s[24:27], s35 offen
    s_endpgm
Lp_w:
    s_load_dwordx4 s[8:11], s[0:1], {KA['wg']}
    s_load_dwordx2 s[12:13], s[0:1], {KA['wd']}
    s_mov_b32 s40, 0x05040100
    s_mov_b32 s41, 0x07060302
    s_mov_b32 s43, 0x3f803f80
    s_mov_b32 s44, 0xffff0000
    s_sub_u32 s20, s2, {NA}
    s_lshl_b32 s20, s20, 3
    s_add_u32 s20, s20, s3
    s_cmp_ge_u32 s20, {344+172}
    s_cbranch_scc1 Lp_end
    s_cmp_ge_u32 s20, 344
    s_cbranch_scc1 Lp_c
    s_cmp_ge_u32 s20, 172
    s_cselect_b32 s21, 1, 0
    s_mul_i32 s22, s21, 172
    s_sub_u32 s20, s20, s22
    v_mul_u32_u24 v3, {8*2752}, v1
    s_lshl_b32 s30, s20, 4
    s_mov_b32 s31, 2752
    v_lshrrev_b32 v4, 1, v1
    v_mul_u32_u24 v4, {NT*1024}, v4
    v_and_b32 v5, 1, v1
    v_lshl_add_u32 v4, v5, 9, v4
    s_lshr_b32 s32, s20, 1
    s_lshl_b32 s32, s32, 10
    s_and_b32 s33, s20, 1
    s_lshl_b32 s33, s33, 6
    s_add_u32 s32, s32, s33
    s_lshl_b32 s33, s21, 8
    s_add_u32 s32, s32, s33
    s_add_u32 s32, s32, {WS_WUP}
    s_waitcnt lgkmcnt(0)
    s_cmp_eq_u32 s21, 0
    s_cselect_b32 s14, s8, s10
    s_cselect_b32 s15, s9, s11
    s_mov_b32 s21, 1
    s_branch Lp_wcommon
Lp_c:
    s_sub_u32 s20, s20, 344
    v_lshlrev_b32 v3, 4, v1
    s_lshl_b32 s30, s20, 13
    s_mov_b32 s31, 1024
    v_lshrrev_b32 v4, 3, v1
    v_mul_u32_u24 v4, {NT*2048}, v4
    v_bfe_u32 v5, v1, 2, 1
    v_lshl_add_u32 v4, v5, 10, v4
    v_bfe_u32 v5, v1, 1, 1
    v_lshl_add_u32 v4, v5, 8, v4
    v_and_b32 v5, 1, v1
    v_lshl_add_u32 v4, v5, 6, v4
    s_lshr_b32 s32, s20, 1
    s_lshl_b32 s32, s32, 11
    s_and_b32 s33, s20, 1
    s_lshl_b32 s33, s33, 9
    s_add_u32 s32, s32, s33
    s_add_u32 s32, s32, {WS_WDN}
    s_waitcnt lgkmcnt(0)
    s_mov_b32 s14, s12
    s_mov_b32 s15, s13
    s_mov_b32 s21, 0
Lp_wcommon:
    """)
    srd(k, 16, "s14", "s15", D*F*2)
    srd(k, 24, "s4", "s5", WS_END)
    for i in range(8):
        k(f"buffer_load_dwordx4 v[{8+4*i}:{11+4*i}], v3, s[16:19], s30 offen")
        if i < 7: k("s_add_u32 s30, s30, s31")
    for m in range(4):
        k(f"s_waitcnt vmcnt({6-2*m})")
        for kk in range(4):
            a = 8+4*(2*m)+kk; b = 8+4*(2*m+1)+kk
            k(f"v_perm_b32 v{40+4*(2*kk)+m}, v{b}, v{a}, s40\nv_perm_b32 v{40+4*(2*kk+1)+m}, v{b}, v{a}, s41")
    for fi in range(8):
        k(f"buffer_store_dwordx4 v[{40+4*fi}:{43+4*fi}], v4, s[24:27], s32 offen offset:{((fi&3)+8*(fi>>2))*16}")
    k(f"""
    s_cmp_eq_u32 s21, 0
    s_cbranch_scc1 Lp_end
    """)
    for fi in range(8): k(f"v_mov_b32 v{8+fi}, 0")
    for m in range(4):
        for fi in range(8): k(f"v_dot2c_f32_bf16 v{8+fi}, s43, v{40+4*fi+m}")
    for i in range(4): k(f"v_permlane32_swap_b32 v{8+i}, v{12+i}")
    for i in range(4): k(f"v_add_f32 v{8+i}, v{8+i}, v{12+i}")
    for i in range(2): k(f"v_permlane16_swap_b32 v{8+i}, v{10+i}")
    for i in range(2): k(f"v_add_f32 v{8+i}, v{8+i}, v{10+i}")
    for r in (8,4,2,1):
        for i in range(2): k(f"v_add_f32_dpp v{8+i}, v{8+i}, v{8+i} row_ror:{r} row_mask:0xf bank_mask:0xf")
    k(f"""
    v_cmp_eq_u32 vcc, 1, v5
    v_cndmask_b32 v8, v8, v9, vcc
    v_and_b32 v6, 2, v1
    v_cmp_eq_u32 vcc, 0, v6
    v_cndmask_b32 v8, 0, v8, vcc
    v_cvt_pk_bf16_f32 v9, v8, v8
    v_and_b32 v9, s44, v9
    v_sub_f32 v10, v8, v9
    v_cvt_pk_bf16_f32 v12, v8, v10
    v_and_b32 v11, s44, v12
    v_sub_f32 v10, v10, v11
    v_cvt_pk_bf16_f32 v13, v10, 0
    v_mov_b32 v14, 0
    v_mov_b32 v15, 0
    v_bfe_u32 v7, v1, 4, 1
    v_lshl_add_u32 v5, v7, 1, v5
    v_lshrrev_b32 v7, 5, v1
    v_lshl_add_u32 v5, v7, 3, v5
    v_lshlrev_b32 v5, 4, v5
    v_lshl_add_u32 v5, v6, 8, v5
    s_add_u32 s32, s32, {32*NT*1024}
    s_mov_b32 exec_lo, 0x000f000f
    s_mov_b32 exec_hi, 0x000f000f
    buffer_store_dwordx4 v[12:15], v5, s[24:27], s32 offen
Lp_end:
    s_endpgm
    """)
    return k.l, dict(vgpr=96, lds=PREP_LDS, grid=PREP_GRID, block=512)
```

```python
T=2048; D=512; F=1376; NT=86
KROW=4160
WS_KR  = 0x0000000
WS_XP0 = 0x0210000
WS_XP2 = 0x0410000
WS_XF1 = 0x0610000
WS_XF3 = 0x0810000
WS_H   = 0x0A10000
WS_WUP = 0x0F70000
WS_WDN = 0x1240000
WS_ST0 = 0x13A0000
WS_ST2 = 0x13A4000
WS_END = 0x13B0000
KA = dict(u=0, lar=8, aim=16, cre=24, cim=32, ldt=40, dsk=48, bx=56, wg=64, wu=72, wd=80, out=88, dbg=96, ws=104)
```

```python
import sys, os
sys.path.insert(0, os.path.dirname(__file__))
from asmlib import *
from layout import *

HDR = open("interleave_layers__ssm_conv_s4d__glu_gated_bilinear__prompt.s.ref").read().split("; Override launch")[0]

def kd(name, vgpr, acc=None, sgpr=96):
    if acc is None: acc = min(256, (vgpr + 3) // 4 * 4)
    return f""".p2align 6
.amdhsa_kernel {name}
  .amdhsa_next_free_vgpr {vgpr}
  .amdhsa_next_free_sgpr {sgpr}
  .amdhsa_accum_offset {acc}
  .amdhsa_group_segment_fixed_size 0
  .amdhsa_kernarg_size 112
  .amdhsa_user_sgpr_count 2
  .amdhsa_user_sgpr_kernarg_segment_ptr 1
  .amdhsa_system_sgpr_workgroup_id_x 1
.end_amdhsa_kernel
"""

def build(units, launches, path):
    infos = {}
    text = []
    for lines, info in units:
        l2 = []
        for l in lines:
            if l.strip().startswith("ENTRY "):
                n = l.split()[1]; infos[n] = info
                l2.append(n + ":")
            else: l2.append(l)
        sm = os.environ.get("ST_" + [l for l in lines if l.strip().startswith("ENTRY ")][0].split()[1][:2].upper(), info.get("stmod", ""))
        if sm: l2 = [l + " " + sm if l.strip().startswith("buffer_store") and "s[92:95]" not in l else l for l in l2]
        fixed, tot = fix_hazards(l2, verbose=bool(os.environ.get("HZV")))
        print(f"unit {[n for n in infos if infos[n] is info]}: {len(fixed)} lines, {tot} nop states", file=sys.stderr)
        for l in fixed:
            if l.endswith(":") and l[:-1] in infos:
                n = l[:-1]
                text.append(f".globl {n}\n.p2align 8\n.type {n},@function\n{n}:")
            else: text.append(l)
    hdr = HDR + "".join(f"; @launch kernel={n} grid=({infos[n]['grid']},1,1) block=({infos[n]['block']},1,1) lds={infos[n]['lds']}\n" for n in launches)
    asm = hdr + '.amdgcn_target "amdgcn-amd-amdhsa--gfx950"\n.text\n' + "\n".join(text) + '\nLcode_end:\n.section .rodata,"a"\n'
    for n in dict.fromkeys(launches):
        asm += kd(n, infos[n]['vgpr'], infos[n].get('acc'))
    open(path, "w").write(asm)

if __name__ == "__main__":
    import importlib
    out = sys.argv[1] if len(sys.argv) > 1 else "interleave_layers__ssm_conv_s4d__glu_gated_bilinear__prompt.s"
    import k_prep
    units = []; launches = []
    have = []
    for m in ("k_conv", "k_up", "k_down"):
        try: have.append(importlib.import_module(m))
        except ModuleNotFoundError: pass
    if len(have) >= 1: pl, pi = k_prep.gen_prep("Lpf_start", "Lcode_end-Lpf_start")
    else: pl, pi = k_prep.gen_prep("Lp_pc", "Lcode_end-Lp_pc")
    units.append((["ENTRY prep_kernel"] + pl + ["Lpf_start:"], pi))
    for m in have: units.append(m.gen())
    order = ["prep_kernel","conv1_kernel","up1_kernel","down1_kernel","conv2_kernel","up2_kernel","down2_kernel"]
    names = set()
    for lines, _ in units:
        for l in lines:
            if l.strip().startswith("ENTRY "): names.add(l.split()[1])
    launches = [n for n in order if n in names]
    build(units, launches, out)
```

```python
import re

TRANS = {"v_exp_f32","v_log_f32","v_rcp_f32","v_rsq_f32","v_sqrt_f32","v_sin_f32","v_cos_f32","v_rcp_iflag_f32"}
RMW_VALU = ("v_fmac_","v_dot2c_","v_dot4c_","v_pk_fmac","v_mac_", "v_writelane")

def regs_of(tok):
    tok = tok.strip()
    tok = re.sub(r"^-", "", tok)
    m = re.match(r"^(?:abs|neg)\((.*)\)$", tok)
    if m: tok = m.group(1)
    tok = tok.strip("|")
    m = re.match(r"^([vas])(\d+)$", tok)
    if m: return {(m.group(1), int(m.group(2)))}
    m = re.match(r"^([vas])\[(\d+):(\d+)\]$", tok)
    if m: return {(m.group(1), i) for i in range(int(m.group(2)), int(m.group(3))+1)}
    if tok in ("vcc","vcc_lo","vcc_hi"): return {("s","vcc")}
    if tok in ("exec","exec_lo","exec_hi"): return {("s","exec")}
    if tok == "m0": return {("s","m0")}
    return set()

class Ins:
    def __init__(self, text):
        self.text = text
        t = text.split(";")[0].strip()
        self.label = None
        self.op = None
        self.dst = set(); self.src = set()
        self.srcC = set(); self.srcAB = set()
        self.kind = None
        self.mods = ""
        if not t or t.startswith("."):
            self.kind = "dir"; return
        if t.endswith(":"):
            self.kind = "label"; self.label = t[:-1]; return
        parts = t.split(None, 1)
        op = parts[0]; rest = parts[1] if len(parts) > 1 else ""
        self.op = op
        ops = []; depth = 0; cur = ""
        for ch in rest:
            if ch in "[(": depth += 1
            if ch in "])": depth -= 1
            if ch == "," and depth == 0: ops.append(cur.strip()); cur = ""
            else: cur += ch
        if cur.strip(): ops.append(cur.strip())
        if ops:
            last = ops[-1].split(None, 1)
            ops[-1] = last[0]
            self.mods = last[1] if len(last) > 1 else ""
        self.ops = ops
        R = [regs_of(o) for o in ops]
        base = re.sub(r"_(e32|e64|dpp|sdwa)$", "", op)
        self.base = base
        allsrc = lambda lst: set().union(*lst) if lst else set()
        if op.startswith("v_mfma") or op.startswith("v_smfmac"):
            self.kind = "mfma"
            self.dst = R[0]; self.srcAB = R[1] | R[2]; self.srcC = R[3]; self.src = self.srcAB | self.srcC
            self.passes = 8 if "32x32x16" in op or "32x32x8" in op else 4 if ("16x16x32" in op or "16x16x16" in op) else None
            assert self.passes, op
        elif op.startswith("v_"):
            self.kind = "valu"
            if base.startswith("v_cmpx"):
                self.dst = R[0] | {("s","exec")}; self.src = allsrc(R[1:])
            elif base.startswith("v_cmp"):
                self.dst = R[0]; self.src = allsrc(R[1:])
            elif base in ("v_add_co_u32","v_sub_co_u32","v_subrev_co_u32","v_addc_co_u32","v_subb_co_u32","v_div_scale_f32","v_mad_u64_u32"):
                self.dst = R[0] | R[1]; self.src = allsrc(R[2:])
            elif base.startswith("v_permlane") and "swap" in base or base == "v_swap_b32":
                self.dst = R[0] | R[1]; self.src = R[0] | R[1]
            elif base == "v_nop":
                pass
            else:
                self.dst = R[0]; self.src = allsrc(R[1:])
                if base.startswith(RMW_VALU): self.src |= R[0]
                if "dpp" in op or "row_" in self.mods or "quad_perm" in self.mods:
                    self.src |= R[0]
                if "UNUSED_PRESERVE" in self.mods or base.endswith("_d16_hi"): self.src |= R[0]
            self.is_dpp = op.endswith("_dpp") or "row_" in self.mods or "quad_perm" in self.mods or "wave_" in self.mods
            self.is_trans = base in TRANS
            self.is_dot = base.startswith("v_dot")
            self.is_sdwa_dst = ("dst_sel:" in self.mods and "dst_sel:DWORD" not in self.mods) or (re.search(r"op_sel:\[[01,]*1\]", self.mods) is not None and not base.startswith("v_pk"))
        elif op.startswith("buffer_") or op.startswith("global_") or op.startswith("flat_") or op.startswith("scratch_"):
            self.kind = "vmem"
            self.lds_dma = (" lds" in " " + self.mods) or "load_lds" in op
            self.store_data = set()
            if op in ("buffer_inv","buffer_wbl2"):
                pass
            elif op.startswith("buffer_"):
                if self.lds_dma:
                    self.src = allsrc(R) | {("s","m0")}
                elif "load" in op:
                    self.dst = R[0]; self.src = allsrc(R[1:])
                    if "d16" in op: self.src |= R[0]
                elif "atomic" in op:
                    self.src = allsrc(R)
                    if "sc0" in self.mods: self.dst = R[0]
                else:
                    self.src = allsrc(R); self.store_data = R[0]
            else:
                if self.lds_dma:
                    self.src = allsrc(R) | {("s","m0")}
                elif "load" in op:
                    self.dst = R[0]; self.src = allsrc(R[1:])
                    if "d16" in op: self.src |= R[0]
                elif "atomic" in op:
                    if "sc0" in self.mods: self.dst = R[0]; self.src = allsrc(R[1:])
                    else: self.src = allsrc(R)
                else:
                    self.src = allsrc(R); self.store_data = R[1]
            self.wide_store = bool(self.store_data) and ("x3" in op or "x4" in op)
        elif op.startswith("ds_"):
            self.kind = "ds"
            if "read" in op or "permute" in op or "swizzle" in op or "_rtn" in op:
                self.dst = R[0]; self.src = allsrc(R[1:])
                if "d16" in op: self.src |= R[0]
            else:
                self.src = allsrc(R)
        elif op.startswith("s_"):
            self.kind = "salu"
            if op.startswith(("s_load","s_buffer_load","s_memtime","s_memrealtime","s_atomic")):
                self.kind = "smem"; self.dst = R[0]; self.src = allsrc(R[1:])
            elif op.startswith(("s_cmp","s_cbranch","s_branch","s_waitcnt","s_nop","s_barrier","s_endpgm","s_sleep","s_setprio","s_bitcmp","s_setreg","s_setpc")):
                self.src = allsrc(R)
            else:
                self.dst = R[0]; self.src = allsrc(R[1:])
                if "saveexec" in op: self.dst |= {("s","exec")}
        else:
            raise ValueError("unknown instr: " + text)

    def states(self):
        if self.kind in ("dir","label"): return 0
        if self.op == "s_nop": return int(self.ops[0], 0) + 1
        return 1

def vg(s): return {r for r in s if r[0] in "va"}
def sg(s): return {r for r in s if r[0] == "s"}

def need(p, c):
    n = 0
    pk, ck = p.kind, c.kind
    if pk == "valu":
        pv = vg(p.dst); ps = sg(p.dst)
        if ck == "mfma" and pv & c.src: n = max(n, 3 if p.is_dot else 2)
        if ck == "mfma" and ("s","exec") in ps: n = max(n, 4)
        if ck == "valu":
            if c.is_dpp and pv & c.src: n = max(n, 2)
            if c.is_dpp and ("s","exec") in ps: n = max(n, 5)
            if c.base.startswith("v_permlane"):
                if pv & c.src: n = max(n, 2)
                if ("s","exec") in ps: n = max(n, 4)
            if c.base in ("v_readfirstlane_b32","v_readlane_b32"):
                if pv & c.src: n = max(n, 1)
                if ("s","exec") in ps: n = max(n, 4)
                if c.base == "v_readlane_b32" and ps & sg(c.src): n = max(n, 4)
            if c.base == "v_writelane_b32" and (ps & sg(c.src) or ("s","exec") in ps): n = max(n, 4)
            if p.is_trans and not c.is_trans and pv & c.src: n = max(n, 1)
            if p.is_sdwa_dst and pv & (c.src | c.dst): n = max(n, 1)
            if p.is_dot and (pv & (c.src | c.dst)):
                if c.base == p.base:
                    ab = set().union(*[regs_of(o) for o in c.ops[1:3]])
                    if pv & ab: n = max(n, 3)
                else: n = max(n, 3)
            csrc = sg(c.src)
            if c.base.startswith("v_cndmask") and len(c.ops) == 3: csrc |= {("s","vcc")}
            if (ps - {("s","exec")}) & csrc: n = max(n, 2)
            if ("s","exec") in ps and ("s","exec") in csrc: n = max(n, 2)
            if c.base == "v_div_fmas_f32" and ("s","vcc") in ps: n = max(n, 4)
        if ck in ("vmem",) and ps & sg(c.src): n = max(n, 5)
        if p.is_dot and ck in ("vmem","ds") and pv & c.src: n = max(n, 3)
        if p.is_trans and ck in ("vmem","ds","mfma") and pv & c.src: n = max(n, 2)
        if ck == "salu" and ps & sg(c.src): n = max(n, 1)
    if pk == "salu":
        if ("s","m0") in p.dst and ck == "vmem" and c.lds_dma: n = max(n, 1)
        if ("s","m0") in p.dst and ck == "ds" and "addtid" in c.op: n = max(n, 1)
        if ("s","exec") in p.dst and ck == "valu" and c.is_dpp: n = max(n, 0)
    if pk == "vmem" and p.wide_store:
        if ck == "valu" and p.store_data & c.dst: n = max(n, 2)
        elif ck in ("mfma","vmem","ds") and p.store_data & c.dst: n = max(n, 2)
    if pk == "mfma":
        P = p.passes
        D = p.dst
        big = {4: 8, 8: 12}[P]; ovl = {4: 6, 8: 10}[P]; war = {4: 3, 8: 7}[P]
        if ck == "mfma":
            if D & c.srcAB: n = max(n, big)
            if D & c.srcC:
                if not (D == c.srcC and c.passes == P): n = max(n, ovl)
            if D & c.dst and not (D & c.srcC): n = max(n, big)
        elif ck == "valu":
            if D & (c.src | c.dst): n = max(n, big)
            if p.srcC & c.dst: n = max(n, war)
        elif ck in ("vmem","ds"):
            if D & (c.src | c.dst): n = max(n, big)
            if vg(p.srcC) & c.dst: n = max(n, war)
    return n

MAXD = 14

def fix_hazards(lines, verbose=False):
    ins = [Ins(l) for l in lines]
    changed = True
    total = 0
    while changed:
        changed = False
        labels = {x.label: i for i, x in enumerate(ins) if x.kind == "label"}
        preds = [[] for _ in ins]
        for i, x in enumerate(ins):
            op = x.op or ""
            if i + 1 < len(ins) and op not in ("s_branch","s_endpgm","s_setpc_b64"):
                preds[i+1].append(i)
            if op.startswith(("s_branch","s_cbranch")):
                tgt = x.ops[0]
                assert tgt in labels, tgt
                preds[labels[tgt]].append(i)
        for i, c in enumerate(ins):
            if c.kind in ("dir","label") or c.op in ("s_nop",): continue
            worst = 0
            stack = [(j, 0) for j in preds[i]]
            seen = {}
            while stack:
                j, d = stack.pop()
                if d >= MAXD: continue
                if seen.get(j, 99) <= d: continue
                seen[j] = d
                p = ins[j]
                if p.kind not in ("dir","label"):
                    n = need(p, c)
                    if n - d > worst:
                        worst = n - d; why = p.text
                for k in preds[j]:
                    stack.append((k, d + p.states()))
            if worst > 0:
                if verbose: print(f"hazard: +{worst} before [{c.text.strip()}] after [{why.strip()}]")
                ins.insert(i, Ins(f"    s_nop {worst-1}"))
                total += worst
                changed = True
                break_at = i
                break
        if changed:
            pass
    return [x.text for x in ins], total

class K:
    def __init__(self): self.l = []
    def __call__(self, s):
        for line in s.strip("\n").split("\n"):
            line = line.rstrip()
            if not line.strip(): continue
            st = line.strip()
            if st.startswith(";@"):
                a = st[2:].split()
                if a[0] == "S": stamp(self, int(a[1]))
                elif a[0] == "START": pstart(self, int(a[1]))
                elif a[0] == "END": pend(self)
                continue
            self.l.append(st if st.endswith(":") and not st.startswith(";") else "    " + st)
    def label(self, n): self.l.append(n + ":")

def vr(a, n=1): return f"v{a}" if n == 1 else f"v[{a}:{a+n-1}]"
def ar(a, n=1): return f"a{a}" if n == 1 else f"a[{a}:{a+n-1}]"
def sr(a, n=1): return f"s{a}" if n == 1 else f"s[{a}:{a+n-1}]"

import os
PROF = bool(os.environ.get("PROF"))
PROF_BASE = 0x2000000
def pstart(k, kidx):
    if not PROF: return
    k(f"s_mov_b32 s63, {kidx}\ns_memrealtime s[88:89]\ns_memtime s[64:65]")
    for i in range(1, 12): k(f"s_mov_b32 s{64+2*i}, 0")
def stamp(k, i):
    if not PROF: return
    k(f"s_memtime s[{64+2*i}:{65+2*i}]")
def pend(k, vtmp=0, wave="s3"):
    if not PROF: return
    k(f"""
    s_memtime s[84:85]
    s_waitcnt vmcnt(0)
    s_memtime s[86:87]
    s_memrealtime s[90:91]
    s_mov_b32 s92, s4
    s_and_b32 s93, s5, 0xffff
    s_mov_b32 s94, 0x10000000
    s_mov_b32 s95, 0x20000
    s_mov_b64 exec, -1
    v_mbcnt_lo_u32_b32 v{vtmp+1}, -1, 0
    v_lshlrev_b32 v{vtmp+1}, 2, v{vtmp+1}
    s_lshl_b32 s62, s63, 9
    s_add_u32 s62, s62, s2
    s_lshl_b32 s62, s62, 4
    s_add_u32 s62, s62, {wave}
    s_lshl_b32 s62, s62, 6
    s_add_u32 s62, s62, {PROF_BASE}
    s_getreg_b32 s61, hwreg(HW_REG_XCC_ID)
    s_waitcnt lgkmcnt(0)
    v_mov_b32 v{vtmp}, 0
    """)
    for i in range(14): k(f"v_writelane_b32 v{vtmp}, s{64+2*i}, {i}")
    k(f"""
    v_writelane_b32 v{vtmp}, s61, 14
    s_mov_b64 exec, 0xffff
    buffer_store_dword v{vtmp}, v{vtmp+1}, s[92:95], s62 offen
    """)
```

```python
from asmlib import *
from layout import *
import struct, math
def fl(x): return "0x%08x" % struct.unpack("<I", struct.pack("<f", x))[0]
LOG2E = 1.4426950408889634
L2E_HI = struct.unpack("<f", struct.pack("<f", LOG2E))[0]
L2E_LO = LOG2E - L2E_HI

RS = 544
CS = 64*RS
L_M  = 0
L_XT = 2*CS
L_KT = L_XT + 8192
L_W = L_KT + 8704
PREP_LDS = L_W + 16384

def srd(k, d, lo, hi, size):
    k(f"""
    s_mov_b32 s{d}, {lo}
    s_and_b32 s{d+1}, {hi}, 0xffff
    s_mov_b32 s{d+2}, {size}
    s_mov_b32 s{d+3}, 0x20000
    """)

def cexp(k, o, mult):
    if mult == 1:
        k(f"v_exp_f32 v{o+2}, v30\nv_fract_f32 v{o+1}, v31")
    else:
        k(f"v_mul_f32 v{o+2}, {fl(float(mult))}, v30\nv_mul_f32 v{o+1}, {fl(float(mult))}, v31\nv_exp_f32 v{o+2}, v{o+2}\nv_fract_f32 v{o+1}, v{o+1}")
    k(f"""
    v_cos_f32 v{o}, v{o+1}
    v_sin_f32 v{o+1}, v{o+1}
    """)
    return f"v_mul_f32 v{o}, v{o}, v{o+2}\nv_mul_f32 v{o+1}, v{o+1}, v{o+2}"

def cmul1(o, a, b, t): return f"v_pk_mul_f32 v[{t}:{t+1}], v[{a}:{a+1}], v[{b}:{b+1}] op_sel_hi:[1,0]"
def cmul2(o, a, b, t): return f"v_pk_fma_f32 v[{o}:{o+1}], v[{a}:{a+1}], v[{b}:{b+1}], v[{t}:{t+1}] op_sel:[1,1,0] op_sel_hi:[0,1,1] neg_lo:[1,0,0]"

def gen_prep(prefetch_from, prefetch_bytes):
    k = K()
    k(f"""
    ;@START 0
    s_cmp_ge_u32 s2, 256
    s_cbranch_scc1 Lp_end
    s_load_dwordx2 s[4:5], s[0:1], {KA['ws']}
    v_lshrrev_b32 v2, 6, v0
    v_and_b32 v1, 63, v0
    v_readfirstlane_b32 s3, v2
    s_and_b32 s6, s2, 7
    s_lshr_b32 s7, s2, 3
    s_mov_b32 s43, 0x3f803f80
    s_mov_b32 s44, 0xffff0000
    s_cmp_ge_u32 s3, 8
    s_cbranch_scc1 Lp_w
    s_load_dwordx8 s[8:15], s[0:1], 0
    s_load_dwordx4 s[16:19], s[0:1], 32
    s_load_dwordx2 s[48:49], s[0:1], {KA['dsk']}
    s_lshl_b32 s23, s6, 5
    s_add_u32 s23, s23, s7
    s_lshl_b32 s20, s23, 13
    v_lshl_add_u32 v3, v0, 4, s20
    s_lshl_b32 s21, s23, 9
    v_and_b32 v6, 255, v0
    v_lshl_add_u32 v4, v6, 1, s21
    s_bfe_u32 s31, s3, 0x10001
    s_lshl_b32 s22, s23, 2
    s_lshl_b32 s30, s31, 1
    s_add_u32 s22, s22, s30
    v_mov_b32 v5, s22
    s_mov_b32 s40, {fl(L2E_HI)}
    s_mov_b32 s41, {fl(L2E_LO)}
    s_mov_b32 s42, {fl(math.log(2))}
    s_waitcnt lgkmcnt(0)
    ;@S 1
    s_lshl_b32 s50, s23, 2
    s_load_dword s50, s[48:49], s50
    global_load_ushort v20, v4, s[10:11]
    global_load_ushort v24, v5, s[18:19]
    global_load_ushort v21, v4, s[12:13]
    global_load_ushort v22, v4, s[14:15]
    global_load_ushort v23, v4, s[16:17]
    """)
    srd(k, 24, "s4", "s5", WS_END)
    k(f"""
    v_lshlrev_b32 v12, 3, v6
    v_sub_u32 v12, 2047, v12
    v_cvt_f32_u32 v12, v12
    s_lshr_b32 s34, s3, 2
    s_mul_i32 s35, s34, 4352
    s_add_u32 s35, s35, {L_KT}
    """)
    for e in range(0, 8, 2):
        k(f"""
        v_add_f32 v13, {fl(-float(e))}, v12
        v_add_f32 v14, {fl(-float(e+1))}, v12
        v_cvt_pk_bf16_f32 v13, v13, v14
        v_and_b32 v14, s44, v13
        v_lshlrev_b32 v13, 16, v13
        v_cvt_u32_f32 v14, v14
        v_cvt_u32_f32 v13, v13
        v_lshl_add_u32 v{81+e}, v14, 1, s35
        v_lshl_add_u32 v{80+e}, v13, 1, s35
        """)
    k(f"""
    v_add_f32 v13, {fl(-8.0)}, v12
    v_cvt_pk_bf16_f32 v13, v13, v13
    v_and_b32 v13, s44, v13
    v_cvt_u32_f32 v13, v13
    v_lshl_add_u32 v94, v13, 1, s35
    """)
    k(f"""
    s_and_b32 s36, s3, 1
    s_lshr_b32 s37, s3, 1
    v_and_b32 v12, 15, v1
    v_lshrrev_b32 v17, 4, v1
    v_mul_u32_u24 v13, {RS}, v12
    v_lshl_add_u32 v13, v17, 4, v13
    s_mul_i32 s38, s36, {CS}
    v_add_u32 v88, s38, v13
    s_mul_i32 s39, s37, {16*RS}
    s_add_u32 s39, s39, {16*RS}
    v_add_u32 v89, s39, v88
    s_lshl_b32 s32, s37, 1
    v_lshrrev_b32 v13, 3, v12
    v_add_u32 v13, s32, v13
    v_and_b32 v14, 7, v12
    v_max_i32 v15, 1, v13
    v_add_u32 v15, -1, v15
    v_and_b32 v15, 3, v15
    v_lshlrev_b32 v14, v15, v14
    v_lshlrev_b32 v15, v13, 64
    v_and_b32 v15, 0xffffffbf, v15
    v_and_or_b32 v15, v14, 7, v15
    v_lshrrev_b32 v14, 3, v14
    v_lshl_add_u32 v15, v14, 7, v15
    s_mul_i32 s38, s36, 2176
    s_add_u32 s38, s38, {L_KT//2}
    v_lshl_add_u32 v15, v17, 5, v15
    v_add_lshl_u32 v90, v15, s38, 1
    s_lshl_b32 s39, s7, 16
    s_lshl_b32 s20, s6, 7
    s_add_u32 s39, s39, s20
    v_lshrrev_b32 v13, 3, v0
    v_and_b32 v12, 7, v0
    v_lshlrev_b32 v14, 4, v12
    v_lshl_add_u32 v14, v13, 10, v14
    v_add_u32 v14, s39, v14
    global_load_dwordx4 v[72:75], v14, s[8:9]
    global_load_dwordx4 v[8:11], v3, s[8:9]
    s_barrier
    v_bfe_u32 v14, v0, 5, 3
    v_xor_b32 v14, v14, v12
    v_lshlrev_b32 v14, 4, v14
    v_lshl_add_u32 v93, v13, 7, v14
    v_add_u32 v93, {L_XT}, v93
    s_lshl_b32 s33, s34, 12
    s_add_u32 s33, s33, {L_XT}
    v_lshl_add_u32 v91, v12, 9, v14
    v_and_b32 v14, 3, v13
    v_lshl_add_u32 v91, v14, 2, v91
    v_add_u32 v91, s33, v91
    v_and_b32 v13, 31, v13
    v_lshlrev_b32 v12, 4, v12
    v_lshl_add_u32 v92, v13, 13, v12
    s_lshl_b32 s33, s6, 18
    s_lshl_b32 s38, s7, 8
    s_add_u32 s29, s33, s38
    s_lshl_b32 s38, s34, 7
    s_add_u32 s29, s29, s38
    s_add_u32 s29, s29, {WS_XP0}
    v_and_b32 v7, 127, v0
    s_mul_i32 s33, s31, {CS}
    v_lshl_add_u32 v7, v7, 2, s33
    s_waitcnt lgkmcnt(0)
    s_lshl_b32 s51, s50, 16
    s_and_b32 s50, s50, s44
    s_cmp_eq_u32 s3, 0
    s_cselect_b32 s50, s51, s50
    s_cmp_lt_u32 s3, 2
    s_cselect_b32 s50, s50, 0
    s_waitcnt vmcnt(5)
    ;@S 2
    v_lshlrev_b32 v20, 16, v20
    v_lshlrev_b32 v24, 16, v24
    v_mul_f32 v26, s40, v20
    v_mul_f32 v28, s40, v24
    v_fma_f32 v27, v20, s40, -v26
    v_fma_f32 v29, v24, s40, -v28
    v_fmac_f32 v27, s41, v20
    v_fmac_f32 v29, s41, v24
    v_exp_f32 v26, v26
    v_exp_f32 v28, v28
    v_mul_f32 v27, s42, v27
    v_mul_f32 v29, s42, v29
    v_fmac_f32 v26, v26, v27
    v_fmac_f32 v28, v28, v29
    v_cvt_pk_bf16_f32 v25, v26, v28
    v_and_b32 v28, s44, v25
    v_lshlrev_b32 v25, 16, v25
    s_waitcnt vmcnt(4)
    v_lshlrev_b32 v21, 16, v21
    v_mul_f32 v30, v25, v28
    v_mul_f32 v31, v21, v28
    v_mul_f32 v30, {fl(-LOG2E)}, v30
    v_mul_f32 v31, 0.15915494, v31
    s_cmp_ge_u32 s3, 4
    s_cbranch_scc1 Lp_hb
    """)
    cnt = [0]
    def put(row, re, neg=False):
        t = 60 + (cnt[0] & 7); cnt[0] += 1
        k(f"v_cvt_pk_bf16_f32 v{t}, v{re}, {'-' if neg else ''}v{re+1}\nds_write_b32 v7, v{t} offset:{L_M+row*RS}")
    f1 = cexp(k, 32, 8); f2 = cexp(k, 36, 128); k(f1); f3 = cexp(k, 40, 1024); k(f2)
    k(f"""
    s_waitcnt vmcnt(2)
    v_add_f32 v28, v28, v28
    v_lshlrev_b32 v22, 16, v22
    v_lshlrev_b32 v23, 16, v23
    v_mul_f32 v44, v22, v28
    v_mul_f32 v45, v23, v28
    """)
    k(f3)
    k(cmul1(46,44,32,50)); k(cmul1(48,32,32,52)); k(cmul2(46,44,32,50)); k(cmul2(48,32,32,52))
    for r in range(8):
        if r < 7: k(cmul1(44,44,48,50)); k(cmul1(46,46,48,52))
        k(cmul1(40,40,36,54))
        put(2*r, 44, True); put(2*r+1, 46, True); put(16+32+r, 40)
        if r < 7: k(cmul2(44,44,48,50)); k(cmul2(46,46,48,52))
        k(cmul2(40,40,36,54))
    put(16+40, 40)
    k("s_branch Lp_x")
    k.label("Lp_hb")
    f1 = cexp(k, 34, 1); f2 = cexp(k, 48, 128); k(f1); k("v_mov_b32 v60, 0x3f80"); k(f2)
    k(f"ds_write_b32 v7, v60 offset:{L_M+16*RS}")
    cnt[0] = 1
    Z = lambda e: 32+2*e
    k(cmul1(Z(2),Z(1),Z(1),52)); put(16+1, Z(1)); k(cmul2(Z(2),Z(1),Z(1),52)); put(16+8, 48)
    k(cmul1(Z(3),Z(2),Z(1),52)); k(cmul1(Z(4),Z(2),Z(2),54)); put(16+2, Z(2)); k(cmul2(Z(3),Z(2),Z(1),52)); k(cmul2(Z(4),Z(2),Z(2),54))
    k(cmul1(Z(0),48,48,58))
    for e in (5,6,7): k(cmul1(Z(e),Z(4),Z(e-4),52+2*(e-5)))
    put(16+3, Z(3)); put(16+4, Z(4))
    k(cmul2(Z(0),48,48,58))
    for e in (5,6,7): k(cmul2(Z(e),Z(4),Z(e-4),52+2*(e-5)))
    put(16+16, Z(0))
    for e in (5,6,7): put(16+e, Z(e))
    def batch(es, rows):
        for n, e in enumerate(es): k(cmul1(Z(e),Z(e),48,50+2*n))
        for n, e in enumerate(es): k(cmul2(Z(e),Z(e),48,50+2*n))
        for e, r in zip(es, rows): put(16+r, Z(e))
    batch([2,4,6,0], [10,12,14,20])
    batch([1,3,5,7], [9,11,13,15])
    batch([2,4,6,0], [17,18,19,24])
    batch([2,4,6,0], [21,22,23,26])
    batch([4,0], [25,28])
    batch([4,0], [27,30])
    batch([4], [29])
    batch([4], [31])
    k(f"""
Lp_x:
    ;@S 4
    v_mov_b32 v28, 0
    v_mov_b32 v29, 0
    v_mov_b32 v30, 0
    v_mov_b32 v31, 0
    v_writelane_b32 v28, s50, 0
    s_waitcnt vmcnt(2) lgkmcnt(0)
    s_barrier
    ;@S 5
    s_cmp_ge_u32 s3, 6
    s_cbranch_scc1 Lp_nomm
    """)
    for half in range(2):
        for ks in range(4):
            kk = 4*half + ks
            k(f"ds_read_b128 v[{40+8*ks}:{43+8*ks}], v88 offset:{L_M+64*kk}\nds_read_b128 v[{44+8*ks}:{47+8*ks}], v89 offset:{L_M+64*kk}") if half == 0 else None
    for ks in range(4):
        k(f"ds_read_b128 v[{12+4*ks}:{15+4*ks}], v88 offset:{L_M+256+64*ks}")
    for ks in range(4):
        k(f"s_waitcnt lgkmcnt({10-2*ks+ks})\nv_mfma_f32_16x16x32_bf16 v[28:31], v[{40+8*ks}:{43+8*ks}], v[{44+8*ks}:{47+8*ks}], v[28:31]")
        k(f"ds_read_b128 v[{72+0}:{75}], v89 offset:{L_M+256}") if False else None
        k(f"ds_read_b128 v[{96+4*ks}:{99+4*ks}], v89 offset:{L_M+256+64*ks}")
    for ks in range(4):
        k(f"s_waitcnt lgkmcnt({3-ks})\nv_mfma_f32_16x16x32_bf16 v[28:31], v[{12+4*ks}:{15+4*ks}], v[{96+4*ks}:{99+4*ks}], v[28:31]")
    k("""
    v_cvt_pk_bf16_f32 v28, v28, v29
    v_cvt_pk_bf16_f32 v30, v30, v31
    ds_write_b16 v90, v28
    ds_write_b16_d16_hi v90, v28 offset:16
    ds_write_b16 v90, v30 offset:32
    ds_write_b16_d16_hi v90, v30 offset:48
Lp_nomm:
    s_waitcnt vmcnt(1)
    ds_write_b128 v93, v[72:75]
    v_mov_b32 v36, 0
    v_mov_b32 v37, 0
    v_mov_b32 v38, 0
    v_mov_b32 v39, 0
    ;@S 6
    s_waitcnt lgkmcnt(0)
    s_barrier
    ;@S 7
    """)
    for e in range(8):
        k(f"ds_read_u16 v{80+e}, v{80+e}")
    k("""
    ds_read_u16 v88, v94
    ds_read_b32 v72, v91
    ds_read_b32 v73, v91 offset:128
    ds_read_b32 v74, v91 offset:256
    ds_read_b32 v75, v91 offset:384
    """)
    k(f"""
    s_lshl_b32 s35, s23, 1
    s_add_u32 s35, s35, s34
    s_mul_i32 s35, s35, {KCH}
    s_add_u32 s35, s35, {WS_KR}
    s_add_u32 s37, s35, {KROW}
    v_lshlrev_b32 v20, 4, v6
    v_cmp_ne_u32 vcc, 255, v6
    """)
    for e in range(0, 8, 2):
        k(f"s_waitcnt lgkmcnt({11-e})\nv_lshl_or_b32 v{12+e//2}, v{81+e}, 16, v{80+e}")
    k("s_waitcnt vmcnt(0)\nbuffer_store_dwordx4 v[12:15], v20, s[24:27], s35 offen\ns_waitcnt lgkmcnt(4)\nv_cndmask_b32 v88, 0, v88, vcc")
    for e in range(0, 8, 2):
        k(f"v_lshl_or_b32 v{16+e//2}, v{82+e}, 16, v{81+e}")
    k("v_cmp_gt_u32 vcc, 64, v20\nbuffer_store_dwordx4 v[16:19], v20, s[24:27], s37 offen\ns_waitcnt lgkmcnt(0)\nbuffer_store_dwordx4 v[72:75], v92, s[24:27], s29 offen")
    for i in range(4):
        k(f"v_dot2c_f32_bf16 v36, s43, v{8+i}\nv_dot2c_f32_bf16 v37, v{8+i}, v{8+i}")
    for m in ("row_shr:1 row_mask:0xf","row_shr:2 row_mask:0xf","row_shr:4 row_mask:0xf","row_shr:8 row_mask:0xf","row_bcast:15 row_mask:0xa","row_bcast:31 row_mask:0xc"):
        k(f"v_add_f32_dpp v36, v36, v36 {m} bank_mask:0xf\nv_add_f32_dpp v37, v37, v37 {m} bank_mask:0xf")
    k(f"""
    s_lshl_b32 s33, s23, 3
    s_add_u32 s33, s33, s3
    s_lshl_b32 s33, s33, 2
    v_mov_b32 v26, s33
    v_mov_b32 v40, 0
    v_mov_b32 v41, 0
    s_mov_b32 s34, {WS_ST0}
    s_mov_b32 s38, {WS_ST0+8192}
    s_lshl_b32 s36, s23, 6
    s_add_u32 s36, s36, {WS_ST2}
    s_add_u32 s35, s35, 4096
    s_add_u32 s37, s37, 4096
    s_mov_b32 exec_lo, 0
    s_mov_b32 exec_hi, 0x80000000
    buffer_store_dword v36, v26, s[24:27], s34 offen
    buffer_store_dword v37, v26, s[24:27], s38 offen
    s_mov_b64 exec, vcc
    s_cbranch_execz Lp_end2
    buffer_store_dwordx4 v[38:41], v20, s[24:27], s35 offen
    buffer_store_dwordx4 v[38:41], v20, s[24:27], s37 offen
    buffer_store_dwordx4 v[38:41], v20, s[24:27], s36 offen
Lp_end2:
    ;@END
    s_endpgm
Lp_w:
    s_load_dwordx4 s[8:11], s[0:1], {KA['wg']}
    s_mul_i32 s22, s6, 22
    s_add_u32 s22, s22, s7
    s_cmp_lt_u32 s7, 22
    s_cbranch_scc1 Lp_w8
    s_load_dwordx2 s[12:13], s[0:1], {KA['wd']}
    s_getpc_b64 s[46:47]
Lp_pc:
    s_add_u32 s46, s46, {prefetch_from}-Lp_pc
    s_addc_u32 s47, s47, 0
    s_sub_u32 s45, s7, 22
    s_lshl_b32 s30, s45, 3
    s_add_u32 s30, s30, s6
    s_mul_i32 s30, s30, {140*128}
    s_lshl_b32 s45, s45, 11
    s_min_u32 s45, s45, {prefetch_bytes}-2048
    v_lshl_add_u32 v6, v1, 4, s45
    v_lshl_add_u32 v7, v1, 7, s30
    v_add_u32 v16, 8192, v7
    v_add_u32 v17, 16384, v7
    s_mov_b32 s18, {F*D*2}
    s_mov_b32 s19, 0x20000
    s_waitcnt lgkmcnt(0)
    s_mov_b32 s16, s12
    s_and_b32 s17, s13, 0xffff
    s_barrier
    global_load_dwordx4 v[8:11], v6, s[46:47]
    global_load_dwordx4 v[12:15], v6, s[46:47] offset:1024
    buffer_load_dword v18, v7, s[16:19], 0 offen
    buffer_load_dword v19, v16, s[16:19], 0 offen
    s_mov_b64 exec, 0xfff
    buffer_load_dword v20, v17, s[16:19], 0 offen
    s_endpgm
Lp_w8:
    s_cmp_ge_u32 s22, 172
    s_cbranch_scc1 Lp_end
    s_cmp_ge_u32 s22, 86
    s_cselect_b32 s21, 1, 0
    s_mul_i32 s20, s21, 86
    s_sub_u32 s20, s22, s20
    v_lshrrev_b32 v4, 1, v1
    v_and_b32 v5, 1, v1
    v_mul_u32_u24 v3, 2752, v4
    v_lshl_add_u32 v3, v5, 4, v3
    s_lshl_b32 s30, s20, 5
    s_lshl_b32 s32, s20, 10
    s_lshl_b32 s33, s21, 8
    s_add_u32 s32, s32, s33
    s_add_u32 s32, s32, {WS_WUP}
    s_mov_b32 s31, {L_W}
    s_waitcnt lgkmcnt(0)
    s_cmp_eq_u32 s21, 0
    s_cselect_b32 s14, s8, s10
    s_cselect_b32 s15, s9, s11
    ;@S 1
    """)
    srd(k, 16, "s14", "s15", D*F*2)
    k("s_barrier")
    for i in range(16):
        k(f"s_add_u32 m0, s31, {1024*i}\nbuffer_load_dwordx4 v3, s[16:19], s30 offen lds")
        if i < 15: k(f"s_add_u32 s30, s30, {32*2752}")
    srd(k, 24, "s4", "s5", WS_END)
    k(f"""
    v_lshrrev_b32 v6, 4, v1
    v_bfe_u32 v7, v1, 2, 2
    v_lshlrev_b32 v7, 5, v7
    v_lshl_add_u32 v7, v6, 8, v7
    v_lshl_add_u32 v7, v5, 4, v7
    v_bfe_u32 v2, v1, 1, 1
    v_lshl_add_u32 v7, v2, 3, v7
    v_add_u32 v7, s31, v7
    v_lshrrev_b32 v2, 5, v1
    v_mul_u32_u24 v4, {NT*1024}, v2
    v_and_b32 v6, 1, v6
    v_lshlrev_b32 v6, 9, v6
    v_and_b32 v2, 15, v1
    v_lshl_add_u32 v6, v2, 4, v6
    v_add_u32 v4, v4, v6
    v_mov_b32 v72, 0
    v_mov_b32 v73, 0
    v_mov_b32 v74, 0
    v_mov_b32 v75, 0
    s_barrier
    s_barrier
    """)
    for g in range(4):
        k(f"s_waitcnt vmcnt({12 if g < 3 or True else 0})")
        if g == 0: k(";@S 2")
        for i in range(4*g, 4*g+4):
            k(f"ds_read_b64_tr_b16 v[{8+4*i}:{9+4*i}], v7 offset:{1024*i}\nds_read_b64_tr_b16 v[{10+4*i}:{11+4*i}], v7 offset:{1024*i+128}")
        for i in range(4*g, 4*g+4):
            k(f"s_waitcnt lgkmcnt({6-2*(i&3)})\nbuffer_store_dwordx4 v[{8+4*i}:{11+4*i}], v4, s[24:27], s32 offen\ns_add_u32 s32, s32, {2*NT*1024}")
            for m in range(4): k(f"v_dot2c_f32_bf16 v{72+m}, s43, v{8+4*i+m}")
    k(";@S 3")
    A = 72
    k(f"""
    v_add_f32 v72, v72, v73
    v_add_f32 v74, v74, v75
    v_add_f32 v72, v72, v74
    v_mov_b32 v73, v72
    v_permlane32_swap_b32 v72, v73
    v_add_f32 v72, v72, v73
    v_mov_b32 v73, v72
    v_permlane16_swap_b32 v72, v73
    v_add_f32 v72, v72, v73
    v_cmp_gt_u32 vcc, 16, v1
    v_cndmask_b32 v{A}, 0, v{A}, vcc
    v_cvt_pk_bf16_f32 v{A+1}, v{A}, v{A}
    v_and_b32 v{A+1}, s44, v{A+1}
    v_sub_f32 v{A+2}, v{A}, v{A+1}
    v_cvt_pk_bf16_f32 v{A+4}, v{A}, v{A+2}
    v_and_b32 v{A+3}, s44, v{A+4}
    v_sub_f32 v{A+2}, v{A+2}, v{A+3}
    v_cvt_pk_bf16_f32 v{A+5}, v{A+2}, 0
    v_mov_b32 v{A+6}, 0
    v_mov_b32 v{A+7}, 0
    s_mov_b32 exec_hi, 0
    buffer_store_dwordx4 v[{A+4}:{A+7}], v6, s[24:27], s32 offen
    ;@END
Lp_end:
    s_endpgm
    """)
    return k.l, dict(vgpr=112, lds=PREP_LDS, grid=256, block=576)
```

```python
T=2048; D=512; F=1376; NT=86
KROW=4160
KCH=2*KROW
WS_KR  = 0x0000000
WS_XP0 = 0x0410000
WS_XP2 = 0x0610000
WS_XT1 = 0x0810000
WS_XT3 = 0x0A10000
WS_H   = 0x0C10000
WS_WUP = 0x1170000
WS_ST0 = 0x1440000
WS_ST2 = 0x1444000
WS_END = 0x1450000
KA = dict(u=0, lar=8, aim=16, cre=24, cim=32, ldt=40, dsk=48, bx=56, wg=64, wu=72, wd=80, out=88, dbg=96, ws=104)
```

```python
import sys
src, out, Kf, sa, sb = sys.argv[1:6]
PB=0x2000000; PB2=0x2400000
SP = {
 "ps": (PB+48, 64, 4096, "min"),
 "pe": (PB+52, 64, 4096, "max"),
 "ms": (PB2, 256, 2048, "min"),
 "mx": (PB2, 256, 2048, "max"),
 "me": (PB2+192, 256, 1024, "max"),
 "now": None,
}
def spec(s):
    if s in SP: return SP[s]
    ro,q,st,m = s.split(",")
    return (PB2 + (0 if ro=="C" else 256*1024) + int(q)*64 + int(st)*4, 256, 1024, m)
s = open(src).read()
body = """
s_memrealtime s[20:21]
s_cmp_ge_u32 s2, 1
s_cbranch_scc1 Lms_end
s_load_dwordx2 s[4:5], s[0:1], 104
s_mov_b32 s14, 0x10000000
s_mov_b32 s15, 0x20000
v_mov_b32 v10, 0
v_mov_b32 v11, 0
v_mov_b32 v12, 0
v_mov_b32 v13, 0
s_waitcnt lgkmcnt(0)
s_mov_b32 s12, s4
s_and_b32 s13, s5, 0xffff
s_sub_u32 s22, s20, 30000
v_mov_b32 v14, s22
v_mov_b32 v15, s22
v_cmp_eq_u32 vcc, 0, v0
s_and_saveexec_b64 s[26:27], vcc
ds_write_b128 v10, v[12:15]
s_mov_b64 exec, s[26:27]
s_waitcnt lgkmcnt(0)
s_barrier
ds_read_b32 v14, v10 offset:8
s_waitcnt lgkmcnt(0)
v_readfirstlane_b32 s22, v14
s_nop 4
s_add_u32 s20, s22, 30000
"""
for j, nm in enumerate((sa, sb)):
    sp = spec(nm)
    if sp is None:
        body += f"v_mov_b32 v20, 30000\nds_max_u32 v10, v20 offset:{4*j}\n"; continue
    base, st, cnt, m = sp
    n = cnt // 1024
    body += f"v_mul_u32_u24 v1, {st}, v0\n"
    for i in range(n):
        body += f"s_mov_b32 s24, {base + i*1024*st}\nbuffer_load_dword v{20+i}, v1, s[12:15], s24 offen sc0 sc1\n"
    body += "s_waitcnt vmcnt(0)\n"
    for i in range(n):
        body += f"v_subrev_u32 v{20+i}, s22, v{20+i}\n"
        if m == "min": body += f"v_sub_u32 v{20+i}, 30000, v{20+i}\n"
        body += f"v_cmp_gt_u32 vcc, 30000, v{20+i}\ns_nop 2\nv_cndmask_b32 v{20+i}, v11, v{20+i}, vcc\nds_max_u32 v10, v{20+i} offset:{4*j}\n"
body += """
s_waitcnt lgkmcnt(0)
s_barrier
ds_read_b64 v[14:15], v10
s_waitcnt lgkmcnt(0)
v_readfirstlane_b32 s30, v14
v_readfirstlane_b32 s31, v15
s_nop 4
"""
for j, nm in enumerate((sa, sb)):
    sp = spec(nm)
    if sp is not None and sp[3] == "min": body += f"s_sub_u32 s{30+j}, 30000, s{30+j}\n"
body += f"""
s_sub_u32 s30, s30, s31
s_min_u32 s30, s30, 10000
s_mul_i32 s30, s30, {Kf}
Lms_l:
s_sleep 2
s_memrealtime s[24:25]
s_waitcnt lgkmcnt(0)
s_sub_u32 s24, s24, s20
s_cmp_lt_u32 s24, s30
s_cbranch_scc1 Lms_l
Lms_end:
s_endpgm
"""
M = [l for l in s.split("\n") if l.startswith("; @launch")][-1] + "\n"
E = "; @launch kernel=meas_kernel grid=(1,1,1) block=(1024,1,1) lds=256\n"
t = s.replace(M, M+E)
t = t.replace("Lcode_end:\n", "Lcode_end:\n.globl meas_kernel\n.p2align 8\n.type meas_kernel,@function\nmeas_kernel:\n" + body)
kd = t[t.index(".p2align 6\n.amdhsa_kernel main_kernel"):]
t = t + kd.replace("main_kernel", "meas_kernel").replace("256", "32")
open(out, "w").write(t)
```
